```python
import torch

def _softmax(x, axis=-1):
    return torch.softmax(x, dim=axis)

def _gelu(x):
    return torch.nn.functional.gelu(x, approximate='tanh')

def _silu(x):
    return torch.nn.functional.silu(x)

def _sigmoid(x):
    return torch.sigmoid(x)

def _layernorm(x, axis=-1, eps=1e-05):
    m = x.mean(dim=axis, keepdim=True)
    v = x.var(dim=axis, keepdim=True, unbiased=False)
    return (x - m) / torch.sqrt(v + eps)

def _scatter_add(tgt, idx, src, axis=0):
    return tgt.clone().index_add_(axis, idx, src)

def _segment_sum(src, seg, n):
    out = torch.zeros((n,) + src.shape[1:], dtype=src.dtype)
    return out.index_add_(0, seg, src)

def _pad(x, pw):
    flat = tuple((v for pair in reversed(pw) for v in pair))
    return torch.nn.functional.pad(x, flat)
kernel_name = 'adaLN_cond__mha_block_cached__mixer_token_mlp__decode'

def setup_inputs():

    _w = lambda a: (lambda t: t.to(torch.bfloat16) if t.is_floating_point() else t)(torch.as_tensor(a))

    def _A_setup():
        B, Sq, D = (1, 1, 512)
        H, Sk, Dh = (32, 16384, 128)
        return {'x': _w((lambda *s: torch.randn(*s, dtype=torch.bfloat16) * 0.05)(B, Sq, D)), 'k_cache': _w((lambda *s: torch.randn(*s, dtype=torch.bfloat16) * 1.6)(B, H, Sk, Dh)), 'v_cache': _w((lambda *s: torch.randn(*s, dtype=torch.bfloat16) * 1.6)(B, H, Sk, Dh)), 'wq': _w((lambda *s: torch.randn(*s, dtype=torch.bfloat16) * 1.6)(D, H * Dh) * D ** (-0.5)), 'wo': _w((lambda *s: torch.randn(*s, dtype=torch.bfloat16) * 1.6)(H * Dh, D) * (H * Dh) ** (-0.5))}
    _A_in = _A_setup()

    def _B_setup():
        B, S, D, F = (1, 1, 512, 1376)
        return {'x': _w((lambda *s: torch.randn(*s, dtype=torch.bfloat16) * 0.05)(B, S, D)), 'w1': _w((lambda *s: torch.randn(*s, dtype=torch.bfloat16) * 1.6)(S, F) * S ** (-0.5)), 'b1': _w((lambda *s: torch.randn(*s, dtype=torch.bfloat16) * 1.6)(F) * 0.02), 'w2': _w((lambda *s: torch.randn(*s, dtype=torch.bfloat16) * 1.6)(F, S) * F ** (-0.5)), 'b2': _w((lambda *s: torch.randn(*s, dtype=torch.bfloat16) * 1.6)(S) * 0.02)}
    _B_in = _B_setup()
    return {'A_x': _A_in['x'], 'A_k_cache': _A_in['k_cache'], 'A_v_cache': _A_in['v_cache'], 'A_wq': _A_in['wq'], 'A_wo': _A_in['wo'], 'B_x': _B_in['x'], 'B_w1': _B_in['w1'], 'B_b1': _B_in['b1'], 'B_w2': _B_in['w2'], 'B_b2': _B_in['b2'], 'c': _w((lambda *s: torch.randn(*s, dtype=torch.bfloat16) * 0.05)(1, 512) * 8.0), 'w_mod': _w((lambda *s: torch.randn(*s, dtype=torch.bfloat16) * 0.05)(512, 6 * 512) * 512 ** (-0.5) * 8.0)}

def reference(A_x, A_k_cache, A_v_cache, A_wq, A_wo, B_x, B_w1, B_b1, B_w2, B_b2, c, w_mod):

    def _A_ref(x, k_cache, v_cache, wq, wo):
        B, Sq, D = x.shape
        H, Dh = (32, 128)
        q = (lambda x, *d: x.permute(*d))((x @ wq).reshape(B, Sq, H, Dh), 0, 2, 1, 3)
        scores = torch.einsum('bhqd,bhkd->bhqk', q, k_cache) * Dh ** (-0.5)
        p = _softmax(scores, axis=-1)
        o = torch.einsum('bhqk,bhkd->bhqd', p, v_cache)
        return (lambda x, *d: x.permute(*d))(o, 0, 2, 1, 3).reshape(B, Sq, H * Dh) @ wo

    def _B_ref(x, w1, b1, w2, b2):
        B, S, D = x.shape
        h = _layernorm(x, axis=-1)
        u = torch.einsum('bsd,sf->bdf', h, w1) + b1
        u = _gelu(u)
        y = torch.einsum('bdf,fs->bds', u, w2) + b2
        return (lambda x, *d: x.permute(*d))(y, 0, 2, 1)
    x = A_x
    mod = (_silu(c) @ w_mod).reshape(c.shape[0], 6, 1, -1)
    sa, ca, ga, sb, cb, gb = (mod[:, 0].clone(), mod[:, 1].clone(), mod[:, 2].clone(), mod[:, 3].clone(), mod[:, 4].clone(), mod[:, 5].clone())
    h = _layernorm(x, axis=-1) * (1 + ca) + sa
    x = x + ga * _A_ref(h, A_k_cache, A_v_cache, A_wq, A_wo)
    h = _layernorm(x, axis=-1) * (1 + cb) + sb
    x = x + gb * _B_ref(h, B_w1, B_b1, B_w2, B_b2)
    return x
```

```python
import re

TRANS = ("v_exp_f32", "v_log_f32", "v_rcp_f32", "v_rsq_f32", "v_sqrt_f32", "v_sin_f32", "v_cos_f32")
_REG = re.compile(r"\b([vs])(\d+)\b|\b([vs])\[(\d+):(\d+)\]|\b(vcc)\b|\b(exec)\b")


def regs_in(tok):
    out = set()
    for m in _REG.finditer(tok):
        if m.group(1):
            out.add((m.group(1), int(m.group(2))))
        elif m.group(3):
            for i in range(int(m.group(4)), int(m.group(5)) + 1):
                out.add((m.group(3), i))
        elif m.group(6):
            out.add(("s", 106)); out.add(("s", 107))
        elif m.group(7):
            out.add(("s", 126)); out.add(("s", 127))
    return out


def split_ops(rest):
    ops, depth, cur = [], 0, ""
    for ch in rest:
        if ch == "[":
            depth += 1
        if ch == "]":
            depth -= 1
        if ch == "," and depth == 0:
            ops.append(cur.strip()); cur = ""
        else:
            cur += ch
    if cur.strip():
        ops.append(cur.strip())
    return ops


class Ins:
    def __init__(self, text):
        self.text = text
        t = text.split(";")[0].strip()
        self.is_label = t.endswith(":")
        self.is_dir = t.startswith(".") or t == ""
        self.mn = ""
        self.ops = []
        if not self.is_label and not self.is_dir:
            parts = t.split(None, 1)
            self.mn = parts[0]
            rest = parts[1] if len(parts) > 1 else ""
            self.ops = split_ops(rest)
        mn = self.mn
        self.valu = mn.startswith("v_")
        self.vmem = mn.startswith(("buffer_", "global_", "flat_"))
        self.ds = mn.startswith("ds_")
        self.trans = mn.replace("_e32", "").replace("_e64", "") in TRANS
        self.dot = mn.startswith("v_dot")
        self.dpp = self.valu and ("_dpp" in mn or any(k in t for k in ("quad_perm", "row_", "wave_")))
        self.perml = mn.startswith("v_permlane")
        self.rdlane = mn.startswith(("v_readlane", "v_readfirstlane"))
        self.wr = set()
        self.rd = set()
        if self.valu:
            ops = [o.split(" ")[0] if not o.startswith(("-", "abs")) else o for o in self.ops]
            if self.perml:
                self.wr = regs_in(ops[0]) | regs_in(ops[1]); self.rd = set(self.wr)
            else:
                self.wr = regs_in(ops[0])
                k = 1
                if mn.startswith(("v_add_co", "v_sub_co", "v_addc_co", "v_subb_co", "v_div_scale", "v_mad_u64")):
                    self.wr |= regs_in(ops[1]); k = 2
                for o in ops[k:]:
                    self.rd |= regs_in(o)
                if mn.startswith(("v_fmac", "v_dot2c", "v_mac")) or self.dpp:
                    self.rd |= regs_in(ops[0])
                if mn.startswith("v_cndmask") and len(ops) == 3:
                    self.rd |= {("s", 106), ("s", 107)}
        elif self.vmem or self.ds:
            for o in self.ops:
                self.rd |= regs_in(o.split(" ")[0])
        self.states = 1
        if mn == "s_nop":
            self.states = int(self.ops[0], 0) + 1
        if self.is_label or self.is_dir:
            self.states = 0
        self.wide_store = mn.startswith(("buffer_store_dwordx3", "buffer_store_dwordx4", "global_store_dwordx3", "global_store_dwordx4"))
        if self.wide_store:
            if mn.startswith("buffer"):
                self.sdata = regs_in(self.ops[0])
            else:
                self.sdata = regs_in(self.ops[1])


def need(prod, cons):
    n = 0
    if prod.valu:
        vw = {r for r in prod.wr if r[0] == "v"}
        sw = {r for r in prod.wr if r[0] == "s"}
        if cons.valu:
            if cons.dpp and (vw & cons.rd):
                n = max(n, 2)
            if cons.perml and (vw & cons.rd):
                n = max(n, 2)
            if cons.rdlane and (vw & cons.rd):
                n = max(n, 1)
            if prod.trans and not cons.trans and (vw & (cons.rd | cons.wr)):
                n = max(n, 1)
            if prod.dot and (vw & (cons.rd | cons.wr)):
                same = cons.mn == prod.mn
                if same:
                    ab = set()
                    for o in cons.ops[1:3]:
                        ab |= regs_in(o.split(" ")[0])
                    if vw & ab:
                        n = max(n, 3)
                else:
                    n = max(n, 3)
            if sw & cons.rd:
                n = max(n, 4 if cons.rdlane or cons.mn.startswith("v_writelane") else 2)
        if cons.vmem and (sw & cons.rd):
            n = max(n, 5)
        if (cons.vmem or cons.ds) and prod.dot and (vw & cons.rd):
            n = max(n, 3)
        if (cons.vmem or cons.ds) and prod.trans and (vw & cons.rd):
            n = max(n, 1)
    if prod.wide_store and cons.valu and (prod.sdata & cons.wr):
        n = max(n, 2)
    return n


def fix_hazards(lines):
    out = []
    for text in lines:
        ins = Ins(text)
        if ins.valu or ins.vmem or ins.ds:
            dist = 0
            req = 0
            for p in reversed(out):
                if dist >= 6:
                    break
                n = need(p, ins)
                if n > dist:
                    req = max(req, n - dist)
                dist += p.states
            if req > 0:
                out.append(Ins(f"  s_nop {req-1}"))
        out.append(ins)
    return [i.text for i in out]
```

```python
import sys
from asmlib import fix_hazards

KN = "adaLN_cond__mha_block_cached__mixer_token_mlp__decode_kernel"

HEADER = """; Kernarg layout for this problem (120 bytes, ptrs only, base s[0:1]):
"""

L_RED = 0
L_RED2 = 512
L_ML = 1024
L_FIN = 1152
L_HVEC = 2048
L_QP = 4096
L_QB = 8192
L_OP = 12288
L_OVEC = 16384
L_AVEC = 18432
L_H2 = 20480
L_X1 = 22528
LDS_BYTES = 24576

W_MOD = 0
W_2 = 0x2000
W_1 = 0x10000
WS_BYTES = 0x100000

LOG2E = 0x3FB8AA3B
SCALE = 0x3DB504F3
SPIN_LIMIT = 1 << 18


def f32bits(x):
    import struct
    return struct.unpack("<I", struct.pack("<f", x))[0]


def gen(opt=None):
    opt = opt or {}
    POL = opt.get("pol", "nt")
    STAMP = opt.get("stamp", False)
    L = []
    A = lambda s: L.append("  " + s)
    LAB = lambda s: L.append(s + ":")
    FULL = "row_mask:0xf bank_mask:0xf"

    vTID, vLANE, vOFFK, vOFFWQ = 0, 1, 2, 3
    vQ = 4
    vP = 8
    vS = 24
    vACC = 28
    vT = 36
    vM, vLs, vH = 48, 49, 50
    vA1, vA2, vA3, vA4, vA5 = 51, 52, 53, 54, 55
    vU = 56
    RA, RB, RW = 64, 128, 192
    vWO = 192
    vW1, vB1, vW2 = 200, 202, 204
    vB2 = 206
    vCNT = 207
    vX = 208
    vGA, vSB, vCB = 212, 216, 220
    vGB = 224
    vG = 228

    sW = 3
    S_K, S_V, S_WQ = "s[4:7]", "s[8:11]", "s[12:15]"
    S_WO, S_WM, S_C, S_X = "s[48:51]", "s[52:55]", "s[56:59]", "s[60:63]"
    S_W1, S_B1, S_W2, S_B2 = "s[64:67]", "s[68:71]", "s[72:75]", "s[76:79]"
    S_OUT, S_DBG, S_WS = "s[80:83]", "s[84:87]", "s[88:91]"
    sA, sIDX, sHEAD, sSPLIT, sKV, sT0, sWQB, sMODC = 16, 17, 18, 19, 20, 21, 22, 23
    sT1, sT2, sT3 = 24, 25, 26
    sSL1, sSL2 = 27, 28
    sMB1, sMB0 = "s[30:31]", "s[32:33]"
    sCNT = 36
    sHI = 46
    sLOG2E = 47
    sC1, sC2 = 92, 93
    sSTAMP = 94

    Q = []

    def vm_issue(tag):
        Q.append(tag)

    def vm_wait_for(tags):
        idx = max([i for i, t in enumerate(Q) if t in tags], default=-1)
        if idx < 0:
            return
        n = len(Q) - 1 - idx
        A(f"s_waitcnt vmcnt({n})")
        del Q[: idx + 1]

    def rnd2(a, b, t):
        A(f"v_cvt_pk_bf16_f32 v{t}, v{a}, v{b}")
        A(f"v_lshlrev_b32 v{a}, 16, v{t}")
        A(f"v_and_b32 v{b}, s{sHI}, v{t}")

    def rnd1(a):
        A(f"v_cvt_pk_bf16_f32 v{a}, v{a}, v{a}")
        A(f"v_and_b32 v{a}, s{sHI}, v{a}")

    def wave_red(op, v, t):
        for d in ("quad_perm:[1,0,3,2]", "quad_perm:[2,3,0,1]", "row_half_mirror", "row_mirror"):
            A(f"v_{op}_f32_dpp v{v}, v{v}, v{v} {d} {FULL}")
        for sw in ("v_permlane16_swap_b32", "v_permlane32_swap_b32"):
            A(f"v_mov_b32 v{t}, v{v}")
            A(f"{sw} v{v}, v{t}")
            A(f"v_{op}_f32 v{v}, v{v}, v{t}")

    def red8(op, regs):
        for d in ("quad_perm:[1,0,3,2]", "quad_perm:[2,3,0,1]", "row_half_mirror"):
            for v in regs:
                A(f"v_{op}_f32_dpp v{v}, v{v}, v{v} {d} {FULL}")

    def gemv16(w0, m0, m1, lds_off):
        a = vACC
        for j, m in ((0, m0), (1, m1)):
            for k in range(4):
                w = w0 + 4 * j + k
                A(f"v_lshlrev_b32 v{vT+(2*k)}, 16, v{w}")
                A(f"v_and_b32 v{vT+(2*k+1)}, s{sHI}, v{w}")
            for k in range(8):
                if j == 0:
                    A(f"v_mul_f32 v{a+k}, v{m}, v{vT+k}")
                else:
                    A(f"v_fmac_f32 v{a+k}, v{m}, v{vT+k}")
        for j in range(4):
            A(f"v_add_f32_dpp v{a+j}, v{a+j}, v{a+j} row_ror:8 row_mask:0xf bank_mask:0x3")
        for j in range(4):
            A(f"v_add_f32_dpp v{a+j}, v{a+j+4}, v{a+j+4} row_ror:8 row_mask:0xf bank_mask:0xc")
        for j in range(2):
            A(f"v_add_f32_dpp v{a+j}, v{a+j}, v{a+j} row_shl:4 row_mask:0xf bank_mask:0x5")
        for j in range(2):
            A(f"v_add_f32_dpp v{a+j}, v{a+j+2}, v{a+j+2} row_shr:4 row_mask:0xf bank_mask:0xa")
        A(f"v_add_f32_dpp v{a}, v{a}, v{a} quad_perm:[2,3,0,1] {FULL}")
        A(f"v_add_f32_dpp v{a+1}, v{a+1}, v{a+1} quad_perm:[2,3,0,1] {FULL}")
        A(f"v_cndmask_b32 v{a}, v{a}, v{a+1}, {sMB1}")
        for sw in ("v_permlane32_swap_b32", "v_permlane16_swap_b32"):
            A(f"v_mov_b32 v{a+1}, v{a}")
            A(f"{sw} v{a}, v{a+1}")
            A(f"v_add_f32 v{a}, v{a}, v{a+1}")
        A(f"v_and_b32 v{vT}, 1, v{vLANE}")
        A(f"v_lshlrev_b32 v{vT}, 5, v{vT}")
        A(f"v_bfe_u32 v{vT+1}, v{vLANE}, 1, 3")
        A(f"v_lshl_add_u32 v{vT}, v{vT+1}, 2, v{vT}")
        A(f"s_lshl_b32 s{sT0}, s{sW}, 6")
        A(f"v_add_u32 v{vT}, s{sT0}, v{vT}")
        A(f"ds_write_b32 v{vT}, v{a} offset:{lds_off}")

    def gemv16_final(lds_off):
        A(f"v_and_b32 v{vT}, 3, v{vLANE}")
        A(f"v_lshlrev_b32 v{vT}, 4, v{vT}")
        for w in range(8):
            A(f"ds_read_b128 v[{vG+4*(w%4)}:{vG+4*(w%4)+3}], v{vT} offset:{lds_off+64*w}")
            if w % 4 == 3:
                A("s_waitcnt lgkmcnt(0)")
                for k in range(4):
                    A(f"v_add_f32 v{vG+k}, v{vG+k}, v{vG+4+k}")
                    A(f"v_add_f32 v{vG+8+k}, v{vG+8+k}, v{vG+12+k}")
                for k in range(4):
                    if w == 3:
                        A(f"v_add_f32 v{vACC+k}, v{vG+k}, v{vG+8+k}")
                    else:
                        A(f"v_add_f32 v{vG+k}, v{vG+k}, v{vG+8+k}")
                        A(f"v_add_f32 v{vACC+k}, v{vACC+k}, v{vG+k}")

    def layernorm8(x, d, t):
        A(f"v_add_f32 v{t}, v{x}, v{x+1}")
        for k in range(2, 8):
            A(f"v_add_f32 v{t}, v{t}, v{x+k}")
        wave_red("add", t, t + 1)
        A(f"v_mul_f32 v{t}, 0x3b000000, v{t}")
        for k in range(8):
            A(f"v_sub_f32 v{d+k}, v{x+k}, v{t}")
        A(f"v_mul_f32 v{t+1}, v{d}, v{d}")
        for k in range(1, 8):
            A(f"v_fmac_f32 v{t+1}, v{d+k}, v{d+k}")
        wave_red("add", t + 1, t + 2)
        A(f"v_mul_f32 v{t+1}, 0x3b000000, v{t+1}")
        rnd2(t, t + 1, t + 2)
        A(f"v_add_f32 v{t+1}, 0x{f32bits(1e-5):08x}, v{t+1}")
        rnd1(t + 1)
        A(f"v_sqrt_f32 v{t+1}, v{t+1}")
        rnd1(t + 1)
        A(f"v_rcp_f32 v{t+2}, v{t+1}")
        for k in range(8):
            A(f"v_sub_f32 v{d+k}, v{x+k}, v{t}")
        for k in range(0, 8, 2):
            rnd2(d + k, d + k + 1, t + 3)
        for k in range(8):
            A(f"v_mul_f32 v{t+3}, v{d+k}, v{t+2}")
            A(f"v_fma_f32 v{d+k}, -v{t+3}, v{t+1}, v{d+k}")
            A(f"v_fma_f32 v{d+k}, v{d+k}, v{t+2}, v{t+3}")
        for k in range(0, 8, 2):
            rnd2(d + k, d + k + 1, t + 3)

    def unpack8(src, dst):
        for k in range(4):
            A(f"v_lshlrev_b32 v{dst+2*k}, 16, v{src+k}")
            A(f"v_and_b32 v{dst+2*k+1}, s{sHI}, v{src+k}")

    def modulate8(ln, cpk, spk, t):
        unpack8(cpk, t)
        for k in range(8):
            A(f"v_add_f32 v{t+k}, 1.0, v{t+k}")
        for k in range(0, 8, 2):
            rnd2(t + k, t + k + 1, t + 8)
        for k in range(8):
            A(f"v_mul_f32 v{ln+k}, v{ln+k}, v{t+k}")
        for k in range(0, 8, 2):
            rnd2(ln + k, ln + k + 1, t + 8)
        unpack8(spk, t)
        for k in range(8):
            A(f"v_add_f32 v{ln+k}, v{ln+k}, v{t+k}")
        for k in range(0, 8, 2):
            rnd2(ln + k, ln + k + 1, t + 8)

    def pv_accum(buf, preg, bc, first=False):
        unpack8(buf, vT)
        for k in range(8):
            if first:
                A(f"v_mul_f32_dpp v{vACC+k}, v{preg}, v{vT+k} row_newbcast:{bc} {FULL}")
            else:
                A(f"v_fmac_f32_dpp v{vACC+k}, v{preg}, v{vT+k} row_newbcast:{bc} {FULL}")

    def acc_rs():
        a = vACC
        for j in range(4):
            A(f"v_permlane32_swap_b32 v{a+j}, v{a+j+4}")
        for j in range(4):
            A(f"v_add_f32 v{a+j}, v{a+j}, v{a+j+4}")
        for j in range(2):
            A(f"v_permlane16_swap_b32 v{a+j}, v{a+j+2}")
        for j in range(2):
            A(f"v_add_f32 v{a+j}, v{a+j}, v{a+j+2}")

    def kv_load(n):
        batch, i = n // 16, n % 16
        ring = RA if batch % 2 == 0 else RB
        srd = S_K if n < 64 else S_V
        j = n % 64
        st, u = j // 4, j % 4
        if u == 0:
            A(f"s_add_u32 s{sT0}, s{sKV}, {st*32768}")
        off = f" offset:{u*1024}" if u else ""
        A(f"buffer_load_dwordx4 v[{ring+4*i}:{ring+4*i+3}], v{vOFFK}, {srd}, s{sT0} offen{off} {POL}")

    def wq_load(i):
        A(f"s_add_u32 s{sT0}, s{sWQB}, {i*4*8192}")
        A(f"buffer_load_dwordx4 v[{RW+4*i}:{RW+4*i+3}], v{vOFFWQ}, {S_WQ}, s{sT0} offen")

    def stamp(k):
        if STAMP:
            A(f"s_memrealtime s[{sSTAMP+2*k}:{sSTAMP+2*k+1}]")

    L.append(HEADER + f"; @launch grid=(256,1,1) block=(512,1,1) lds={LDS_BYTES}")
    L.append('.amdgcn_target "amdgcn-amd-amdhsa--gfx950"')
    L.append(".text"); L.append(f".globl {KN}"); L.append(".p2align 8"); L.append(f".type {KN},@function")
    LAB(KN)
    A("s_cmp_ge_u32 s2, 256")
    A("s_cbranch_scc1 L_end")
    A("s_load_dwordx16 s[16:31], s[0:1], 0")
    A("s_load_dwordx8 s[32:39], s[0:1], 64")
    A("s_load_dwordx4 s[40:43], s[0:1], 96")
    A("s_load_dwordx2 s[44:45], s[0:1], 112")
    stamp(0)
    A(f"v_lshrrev_b32 v{vLANE}, 6, v0")
    A(f"v_readfirstlane_b32 s{sW}, v{vLANE}")
    A(f"v_and_b32 v{vLANE}, 63, v0")
    A(f"v_lshlrev_b32 v{vOFFK}, 4, v{vLANE}")
    A(f"v_lshrrev_b32 v{vT}, 4, v{vLANE}")
    A(f"v_and_b32 v{vT+1}, 15, v{vLANE}")
    A(f"v_lshlrev_b32 v{vOFFWQ}, 13, v{vT}")
    A(f"v_lshl_add_u32 v{vOFFWQ}, v{vT+1}, 4, v{vOFFWQ}")
    A(f"s_mov_b32 s{sHI}, 0xffff0000")
    A(f"s_mov_b32 s{sLOG2E}, 0x{LOG2E:08x}")
    A("s_waitcnt lgkmcnt(0)")

    def srd(d, p, nbytes):
        A(f"s_mov_b32 s{d}, s{p}")
        A(f"s_and_b32 s{d+1}, s{p+1}, 0xffff")
        A(f"s_mov_b32 s{d+2}, 0x{nbytes:x}")
        A(f"s_mov_b32 s{d+3}, 0x20000")
    srd(52, 38, 512 * 3072 * 2)
    srd(56, 36, 1024)
    srd(12, 22, 512 * 4096 * 2)
    srd(4, 18, 1 << 27)
    srd(8, 20, 1 << 27)
    srd(48, 24, 4096 * 512 * 2)
    srd(60, 16, 1024)
    srd(64, 28, 2752)
    srd(68, 30, 2752)
    srd(72, 32, 2752)
    srd(76, 34, 2)
    srd(80, 40, 1024)
    srd(84, 42, 256)
    srd(88, 44, WS_BYTES)
    A(f"s_and_b32 s{sA}, s2, 7")
    A(f"s_lshr_b32 s{sIDX}, s2, 3")
    A(f"s_lshr_b32 s{sT0}, s{sIDX}, 3")
    A(f"s_lshl_b32 s{sHEAD}, s{sA}, 2")
    A(f"s_add_u32 s{sHEAD}, s{sHEAD}, s{sT0}")
    A(f"s_and_b32 s{sSPLIT}, s{sIDX}, 7")
    A(f"s_lshl_b32 s{sKV}, s{sHEAD}, 22")
    A(f"s_lshl_b32 s{sT0}, s{sSPLIT}, 19")
    A(f"s_add_u32 s{sKV}, s{sKV}, s{sT0}")
    A(f"s_lshl_b32 s{sT0}, s{sW}, 12")
    A(f"s_add_u32 s{sKV}, s{sKV}, s{sT0}")
    A(f"s_lshl_b32 s{sWQB}, s{sHEAD}, 8")
    A(f"s_lshl_b32 s{sT0}, s{sW}, 19")
    A(f"s_add_u32 s{sWQB}, s{sWQB}, s{sT0}")
    A(f"s_lshr_b32 s{sT0}, s{sIDX}, 2")
    A(f"s_lshl_b32 s{sT0}, s{sT0}, 3")
    A(f"s_add_u32 s{sT0}, s{sT0}, s{sA}")
    A(f"s_lshl_b32 s{sT0}, s{sT0}, 2")
    A(f"s_and_b32 s{sT1}, s{sIDX}, 3")
    A(f"s_add_u32 s{sT0}, s{sT0}, s{sT1}")
    A(f"s_lshl_b32 s{sMODC}, s{sT0}, 5")
    A(f"s_lshl_b32 s{sSL1}, s{sA}, 5")
    A(f"s_add_u32 s{sSL1}, s{sSL1}, s{sIDX}")
    A(f"s_lshl_b32 s{sSL1}, s{sSL1}, 10")
    A(f"s_add_u32 s{sSL1}, s{sSL1}, 0x{W_1:x}")
    A(f"s_lshl_b32 s{sSL2}, s{sA}, 11")
    A(f"s_lshl_b32 s{sT0}, s{sIDX}, 6")
    A(f"s_add_u32 s{sSL2}, s{sSL2}, s{sT0}")
    A(f"s_add_u32 s{sSL2}, s{sSL2}, 0x{W_2:x}")
    A(f"v_and_b32 v{vT}, 2, v{vLANE}")
    A(f"v_cmp_ne_u32 {sMB1}, 0, v{vT}")
    A(f"v_and_b32 v{vT}, 1, v{vLANE}")
    A(f"v_cmp_ne_u32 {sMB0}, 0, v{vT}")
    A(f"v_lshrrev_b32 v{vA1}, 1, v0")
    A(f"v_and_b32 v{vA2}, 1, v0")
    A(f"v_lshlrev_b32 v{vA2}, 4, v{vA2}")
    A(f"s_cmp_ge_u32 s{sIDX}, 24")
    A("s_cbranch_scc1 L_nomodload")
    A(f"v_lshlrev_b32 v{vA3}, 1, v{vA1}")
    A(f"v_mul_u32_u24 v{vA4}, 6144, v{vA1}")
    A(f"v_add_u32 v{vA4}, v{vA4}, v{vA2}")
    A(f"buffer_load_ushort v{vP+8}, v{vA3}, {S_C}, 0 offen")
    A(f"buffer_load_ushort v{vP+9}, v{vA3}, {S_C}, 0 offen offset:512")
    A(f"buffer_load_dwordx4 v[{vP}:{vP+3}], v{vA4}, {S_WM}, s{sMODC} offen")
    A(f"s_add_u32 s{sT0}, s{sMODC}, {256*6144}")
    A(f"buffer_load_dwordx4 v[{vP+4}:{vP+7}], v{vA4}, {S_WM}, s{sT0} offen")
    LAB("L_nomodload")
    A(f"s_cmp_eq_u32 s{sW}, 0")
    A("s_cbranch_scc1 L_w0_a")
    for i in range(16):
        wq_load(i)
    for n in range(32):
        kv_load(n)
    A("s_waitcnt vmcnt(48)")
    A("s_branch L_a_join")
    LAB("L_w0_a")
    A(f"buffer_load_dwordx4 v[{vU}:{vU+3}], v{vOFFK}, {S_X}, 0 offen")
    A(f"v_mov_b32 v{vT}, -1"); A(f"v_mov_b32 v{vT+1}, -1"); A(f"v_mov_b32 v{vT+2}, -1"); A(f"v_mov_b32 v{vT+3}, -1")
    A(f"v_add_u32 v{vA3}, s{sSL1}, v{vOFFK}")
    A(f"s_sub_u32 s{sT0}, s{sSL2}, {60*16}")
    A(f"v_add_u32 v{vA4}, s{sT0}, v{vOFFK}")
    A(f"v_cmp_gt_u32 vcc, 60, v{vLANE}")
    A(f"v_cndmask_b32 v{vA3}, v{vA4}, v{vA3}, vcc")
    A(f"buffer_store_dwordx4 v[{vT}:{vT+3}], v{vA3}, {S_WS}, 0 offen sc1")
    A("s_waitcnt vmcnt(0)")
    LAB("L_a_join")
    A(f"s_cmp_ge_u32 s{sIDX}, 24")
    A("s_cbranch_scc1 L_nomod")
    for j in range(2):
        c = vP + 8 + j
        A(f"v_lshlrev_b32 v{c}, 16, v{c}")
        A(f"v_mul_f32 v{vT+j}, s{sLOG2E}, v{c}")
        A(f"v_exp_f32 v{vT+j}, -v{vT+j}")
        A(f"v_add_f32 v{vT+j}, 1.0, v{vT+j}")
        A(f"v_rcp_f32 v{vT+j}, v{vT+j}")
        A(f"v_mul_f32 v{c}, v{c}, v{vT+j}")
    rnd2(vP + 8, vP + 9, vT)
    gemv16(vP, vP + 8, vP + 9, L_RED)
    A("s_waitcnt lgkmcnt(0)")
    A("s_barrier")
    A(f"s_cmp_lg_u32 s{sW}, 0")
    A("s_cbranch_scc1 L_b2")
    gemv16_final(L_RED)
    A(f"v_cvt_pk_bf16_f32 v{vACC}, v{vACC}, v{vACC+1}")
    A(f"v_cvt_pk_bf16_f32 v{vACC+1}, v{vACC+2}, v{vACC+3}")
    A(f"v_lshlrev_b32 v{vA3}, 3, v{vLANE}")
    A("s_mov_b64 exec, 15")
    A(f"buffer_store_dwordx2 v[{vACC}:{vACC+1}], v{vA3}, {S_WS}, s{sMODC} offen sc1")
    A("s_mov_b64 exec, -1")
    A("s_waitcnt vmcnt(0)")
    LAB("L_nomod")
    A(f"s_cmp_lg_u32 s{sW}, 0")
    A("s_cbranch_scc1 L_b2")
    A(f"v_mov_b32 v{vT}, 1")
    A(f"v_mov_b32 v{vA3}, 128")
    A(f"v_cmp_eq_u32 vcc, 0, v{vLANE}")
    A(f"v_cndmask_b32 v{vA3}, 0, v{vA3}, vcc")
    A(f"s_cmp_lt_u32 s{sIDX}, 8")
    A(f"s_cselect_b32 s{sT0}, 3, 1")
    A(f"s_mov_b32 exec_lo, s{sT0}")
    A("s_mov_b32 exec_hi, 0")
    A(f"buffer_atomic_add v{vT}, v{vA3}, {S_DBG}, 0 offen")
    A("s_mov_b64 exec, -1")
    for i in range(16):
        wq_load(i)
    A(f"v_mov_b32 v{vA3}, 0")
    A(f"s_mov_b32 s{sCNT}, 0")
    LAB("L_pollA")
    A(f"buffer_load_dword v{vT}, v{vA3}, {S_DBG}, 0 offen sc1")
    A("s_waitcnt vmcnt(0)")
    A(f"v_readfirstlane_b32 s{sT0}, v{vT}")
    A(f"s_add_u32 s{sCNT}, s{sCNT}, 1")
    A(f"s_cmp_ge_u32 s{sT0}, 64")
    A("s_cbranch_scc1 L_pollA_done")
    A(f"s_cmp_ge_u32 s{sCNT}, {SPIN_LIMIT}")
    A("s_cbranch_scc1 L_pollA_done")
    A("s_sleep 2")
    A("s_branch L_pollA")
    LAB("L_pollA_done")
    A(f"buffer_load_dwordx4 v[{vQ}:{vQ+3}], v{vOFFK}, {S_WS}, 0 offen sc1")
    A(f"buffer_load_dwordx4 v[{vS}:{vS+3}], v{vOFFK}, {S_WS}, 0 offen offset:1024 sc1")
    for n in range(32):
        kv_load(n)
    unpack8(vU, vP)
    layernorm8(vP, vP + 8, vT)
    A("s_waitcnt vmcnt(32)")
    modulate8(vP + 8, vS, vQ, vT)
    A(f"v_lshlrev_b32 v{vA3}, 5, v{vLANE}")
    A(f"ds_write_b128 v{vA3}, v[{vP+8}:{vP+11}] offset:{L_HVEC}")
    A(f"ds_write_b128 v{vA3}, v[{vP+12}:{vP+15}] offset:{L_HVEC+16}")
    A("s_waitcnt lgkmcnt(0)")
    LAB("L_b2")
    A("s_barrier")
    stamp(1)
    A(f"v_lshrrev_b32 v{vT}, 4, v{vLANE}")
    A(f"v_and_b32 v{vT+1}, 15, v{vLANE}")
    A(f"v_lshl_add_u32 v{vT}, v{vT+1}, 2, v{vT}")
    A(f"s_lshl_b32 s{sT0}, s{sW}, 6")
    A(f"v_add_lshl_u32 v{vT}, v{vT}, s{sT0}, 2")
    A(f"ds_read_b32 v{vH}, v{vT} offset:{L_HVEC}")
    A("s_waitcnt vmcnt(32) lgkmcnt(0)")
    Q.extend([f"kv{n}" for n in range(32)])
    for i in range(16):
        pv_accum(RW + 4 * i, vH, i, first=(i == 0))
    acc_rs()
    A(f"v_lshrrev_b32 v{vA4}, 4, v{vLANE}")
    A(f"v_lshlrev_b32 v{vA4}, 3, v{vA4}")
    A(f"v_and_b32 v{vT+1}, 15, v{vLANE}")
    A(f"v_lshl_add_u32 v{vA4}, v{vT+1}, 5, v{vA4}")
    A(f"s_lshl_b32 s{sT0}, s{sW}, 9")
    A(f"v_add_u32 v{vA4}, s{sT0}, v{vA4}")
    A(f"ds_write_b64 v{vA4}, v[{vACC}:{vACC+1}] offset:{L_QP}")
    A("s_waitcnt lgkmcnt(0)")
    A("s_barrier")
    A(f"v_lshlrev_b32 v{vA3}, 3, v{vLANE}")
    for w in range(8):
        A(f"ds_read_b64 v[{vP+2*w}:{vP+2*w+1}], v{vA3} offset:{L_QP+512*w}")
    A(f"v_lshl_add_u32 v{vA5}, v{vA1}, 10, v{vA2}")
    A(f"s_lshl_b32 s{sT0}, s{sA}, 19")
    A(f"s_lshl_b32 s{sT1}, s{sIDX}, 5")
    A(f"s_add_u32 s{sT0}, s{sT0}, s{sT1}")
    A(f"buffer_load_dwordx4 v[{vWO}:{vWO+3}], v{vA5}, {S_WO}, s{sT0} offen"); vm_issue("tp")
    A(f"s_add_u32 s{sT0}, s{sT0}, {256*1024}")
    A(f"buffer_load_dwordx4 v[{vWO+4}:{vWO+7}], v{vA5}, {S_WO}, s{sT0} offen"); vm_issue("tp")
    A(f"v_lshlrev_b32 v{vA5}, 3, v0")
    A(f"buffer_load_dwordx2 v[{vW1}:{vW1+1}], v{vA5}, {S_W1}, 0 offen"); vm_issue("tp")
    A(f"buffer_load_dwordx2 v[{vB1}:{vB1+1}], v{vA5}, {S_B1}, 0 offen"); vm_issue("tp")
    A(f"buffer_load_dwordx2 v[{vW2}:{vW2+1}], v{vA5}, {S_W2}, 0 offen"); vm_issue("tp")
    A(f"v_mov_b32 v{vA5}, 0")
    A(f"buffer_load_ushort v{vB2}, v{vA5}, {S_B2}, 0 offen"); vm_issue("tp")
    A(f"buffer_load_dwordx4 v[{vX}:{vX+3}], v{vOFFK}, {S_X}, 0 offen"); vm_issue("tp")
    A("s_waitcnt lgkmcnt(0)")
    for x in (2, 4, 6, 8, 10, 12, 14):
        A(f"v_add_f32 v{vP}, v{vP}, v{vP+x}")
        A(f"v_add_f32 v{vP+1}, v{vP+1}, v{vP+x+1}")
    A(f"v_cvt_pk_bf16_f32 v{vP}, v{vP}, v{vP+1}")
    A(f"s_lshl_b32 s{sT0}, s{sW}, 8")
    A(f"v_lshl_add_u32 v{vA3}, v{vLANE}, 2, s{sT0}")
    A(f"ds_write_b32 v{vA3}, v{vP} offset:{L_QB}")
    A(f"v_and_b32 v{vT+1}, 15, v{vLANE}")
    A(f"v_lshl_add_u32 v{vA3}, v{vT+1}, 4, s{sT0}")
    A(f"ds_read_b128 v[{vQ}:{vQ+3}], v{vA3} offset:{L_QB}")
    A("s_waitcnt lgkmcnt(0)")

    nissued = 32
    for batch in range(4):
        ring = RA if batch % 2 == 0 else RB
        for grp in range(4):
            n0 = batch * 16 + grp * 4
            vm_wait_for([f"kv{n0+3}"])
            for u in range(4):
                i = grp * 4 + u
                b = ring + 4 * i
                A(f"v_dot2_f32_bf16 v{vP+i}, v{b}, v{vQ}, 0")
                for k in range(1, 4):
                    A(f"v_dot2_f32_bf16 v{vP+i}, v{b+k}, v{vQ+k}, v{vP+i}")
            for u in range(4):
                kv_load(nissued); vm_issue(f"kv{nissued}"); nissued += 1
        p = vP
        for j in range(8):
            A(f"v_add_f32_dpp v{p+j}, v{p+j}, v{p+j} row_ror:8 row_mask:0xf bank_mask:0x3")
        for j in range(8):
            A(f"v_add_f32_dpp v{p+j}, v{p+j+8}, v{p+j+8} row_ror:8 row_mask:0xf bank_mask:0xc")
        for j in range(4):
            A(f"v_add_f32_dpp v{p+j}, v{p+j}, v{p+j} row_shl:4 row_mask:0xf bank_mask:0x5")
        for j in range(4):
            A(f"v_add_f32_dpp v{p+j}, v{p+j+4}, v{p+j+4} row_shr:4 row_mask:0xf bank_mask:0xa")
        for j in range(4):
            A(f"v_add_f32_dpp v{p+j}, v{p+j}, v{p+j} quad_perm:[2,3,0,1] {FULL}")
        for j in range(2):
            A(f"v_cndmask_b32 v{p+j}, v{p+j}, v{p+j+2}, {sMB1}")
        for j in range(2):
            A(f"v_add_f32_dpp v{p+j}, v{p+j}, v{p+j} quad_perm:[1,0,3,2] {FULL}")
        A(f"v_cndmask_b32 v{vS+batch}, v{p}, v{p+1}, {sMB0}")
    rnd2(vS, vS + 1, vT); rnd2(vS + 2, vS + 3, vT)
    for k in range(4):
        A(f"v_mul_f32 v{vS+k}, 0x{SCALE:08x}, v{vS+k}")
    rnd2(vS, vS + 1, vT); rnd2(vS + 2, vS + 3, vT)
    A(f"v_max_f32 v{vM}, v{vS}, v{vS+1}")
    A(f"v_max3_f32 v{vM}, v{vM}, v{vS+2}, v{vS+3}")
    wave_red("max", vM, vT)
    for k in range(4):
        A(f"v_sub_f32 v{vS+k}, v{vS+k}, v{vM}")
        A(f"v_mul_f32 v{vS+k}, s{sLOG2E}, v{vS+k}")
        A(f"v_exp_f32 v{vS+k}, v{vS+k}")
    A(f"v_add_f32 v{vLs}, v{vS}, v{vS+1}")
    A(f"v_add_f32 v{vT}, v{vS+2}, v{vS+3}")
    A(f"v_add_f32 v{vLs}, v{vLs}, v{vT}")
    wave_red("add", vLs, vT)
    stamp(2)

    for batch in range(4):
        ring = RA if batch % 2 == 0 else RB
        for grp in range(4):
            n0 = 64 + batch * 16 + grp * 4
            vm_wait_for([f"kv{n0+3}"])
            for u in range(4):
                i = grp * 4 + u
                pv_accum(ring + 4 * i, vS + batch, i, first=(batch == 0 and i == 0))
            if nissued < 128:
                for u in range(4):
                    kv_load(nissued); vm_issue(f"kv{nissued}"); nissued += 1
            if batch == 1 and grp == 3:
                A(f"v_mov_b32 v{vA5}, 128")
                A(f"buffer_load_dword v{vCNT}, v{vA5}, {S_DBG}, 0 offen sc1"); vm_issue("cnt")
        if batch == 3:
            pass
    vm_wait_for(["cnt"])
    A(f"v_readfirstlane_b32 s{sT0}, v{vCNT}")
    A(f"s_cmp_ge_u32 s{sT0}, 256")
    A("s_cbranch_scc1 L_pollB_done")
    A(f"s_mov_b32 s{sCNT}, 0")
    LAB("L_pollB")
    A(f"buffer_load_dword v{vCNT}, v{vA5}, {S_DBG}, 0 offen sc1")
    A("s_waitcnt vmcnt(0)")
    A(f"v_readfirstlane_b32 s{sT0}, v{vCNT}")
    A(f"s_add_u32 s{sCNT}, s{sCNT}, 1")
    A(f"s_cmp_ge_u32 s{sT0}, 256")
    A("s_cbranch_scc1 L_pollB_done")
    A(f"s_cmp_ge_u32 s{sCNT}, {SPIN_LIMIT}")
    A("s_cbranch_scc1 L_pollB_done")
    A("s_sleep 2")
    A("s_branch L_pollB")
    LAB("L_pollB_done")
    A(f"buffer_load_dwordx4 v[{vGA}:{vGA+3}], v{vOFFK}, {S_WS}, 0 offen offset:2048 sc1")
    A(f"buffer_load_dwordx4 v[{vSB}:{vSB+3}], v{vOFFK}, {S_WS}, 0 offen offset:3072 sc1")
    A(f"s_movk_i32 s{sT0}, 4096")
    A(f"buffer_load_dwordx4 v[{vCB}:{vCB+3}], v{vOFFK}, {S_WS}, s{sT0} offen sc1")
    A(f"s_lshl_b32 s{sT0}, s2, 2")
    A(f"s_add_u32 s{sT0}, s{sT0}, 5120")
    A(f"v_mov_b32 v{vA5}, 0")
    A(f"buffer_load_dword v{vGB}, v{vA5}, {S_WS}, s{sT0} offen sc1")
    stamp(3)
    acc_rs()
    A(f"ds_write_b64 v{vA4}, v[{vACC}:{vACC+1}] offset:{L_OP}")
    A(f"s_lshl_b32 s{sT0}, s{sW}, 3")
    A(f"v_mov_b32 v{vA3}, s{sT0}")
    A(f"ds_write_b64 v{vA3}, v[{vM}:{vM+1}] offset:{L_ML}")
    A("s_waitcnt lgkmcnt(0)")
    A("s_barrier")
    A(f"s_cmp_lg_u32 s{sW}, 0")
    A("s_cbranch_scc1 L_hop1")
    A(f"v_mov_b32 v{vA3}, 0")
    for k in range(4):
        A(f"ds_read_b128 v[{vP+4*k}:{vP+4*k+3}], v{vA3} offset:{L_ML+16*k}")
    A(f"v_and_b32 v{vA3}, 31, v{vLANE}")
    A(f"v_lshlrev_b32 v{vA3}, 4, v{vA3}")
    for w in range(8):
        A(f"ds_read_b128 v[{RA+4*w}:{RA+4*w+3}], v{vA3} offset:{L_OP+512*w}")
    A("s_waitcnt lgkmcnt(8)")
    A(f"v_max3_f32 v{vM}, v{vP}, v{vP+2}, v{vP+4}")
    A(f"v_max3_f32 v{vM}, v{vM}, v{vP+6}, v{vP+8}")
    A(f"v_max3_f32 v{vM}, v{vM}, v{vP+10}, v{vP+12}")
    A(f"v_max_f32 v{vM}, v{vM}, v{vP+14}")
    for w in range(8):
        A(f"v_sub_f32 v{vP+2*w}, v{vP+2*w}, v{vM}")
        A(f"v_mul_f32 v{vP+2*w}, s{sLOG2E}, v{vP+2*w}")
        A(f"v_exp_f32 v{vP+2*w}, v{vP+2*w}")
    A(f"v_mul_f32 v{vLs}, v{vP}, v{vP+1}")
    for w in range(1, 8):
        A(f"v_fmac_f32 v{vLs}, v{vP+2*w}, v{vP+2*w+1}")
    A("s_waitcnt lgkmcnt(0)")
    for k in range(4):
        A(f"v_mul_f32 v{vACC+k}, v{vP}, v{RA+k}")
    for w in range(1, 8):
        for k in range(4):
            A(f"v_fmac_f32 v{vACC+k}, v{vP+2*w}, v{RA+4*w+k}")
    A(f"v_cmp_gt_u32 vcc, 32, v{vLANE}")
    A(f"v_cndmask_b32 v{vACC}, v{vM}, v{vACC}, vcc")
    A(f"v_cndmask_b32 v{vACC+1}, v{vLs}, v{vACC+1}, vcc")
    A(f"v_cndmask_b32 v{vACC+2}, v{vM}, v{vACC+2}, vcc")
    A(f"v_cndmask_b32 v{vACC+3}, v{vLs}, v{vACC+3}, vcc")
    for k in range(4):
        A(f"v_min_u32 v{vACC+k}, -2, v{vACC+k}")
    A("s_mov_b32 exec_lo, -1")
    A("s_mov_b32 exec_hi, 1")
    A(f"buffer_store_dwordx4 v[{vACC}:{vACC+3}], v{vOFFK}, {S_WS}, s{sSL1} offen sc1")
    A("s_mov_b64 exec, -1")
    LAB("L_hop1")
    A(f"v_and_b32 v{vT}, 7, v{vLANE}")
    A(f"v_lshlrev_b32 v{vA3}, 10, v{vT}")
    A(f"v_lshrrev_b32 v{vT+1}, 3, v{vLANE}")
    A(f"v_lshl_add_u32 v{vA5}, v{vT+1}, 4, v{vA3}")
    A(f"s_lshl_b32 s{sT0}, s{sA}, 15")
    A(f"s_add_u32 s{sT0}, s{sT0}, 0x{W_1:x}")
    A(f"s_lshr_b32 s{sT1}, s{sW}, 1")
    A(f"s_lshl_b32 s{sT2}, s{sT1}, 13")
    A(f"s_add_u32 s{sT0}, s{sT0}, s{sT2}")
    A(f"s_and_b32 s{sT2}, s{sW}, 1")
    A(f"s_lshl_b32 s{sT2}, s{sT2}, 8")
    A(f"s_add_u32 s{sT3}, s{sT0}, s{sT2}")
    A(f"s_mov_b32 s{sCNT}, 0")
    LAB("L_p1")
    A(f"buffer_load_dwordx4 v[{vG}:{vG+3}], v{vA5}, {S_WS}, s{sT3} offen sc1")
    A(f"buffer_load_dwordx4 v[{vG+4}:{vG+7}], v{vA5}, {S_WS}, s{sT3} offen offset:128 sc1")
    A(f"buffer_load_dwordx2 v[{vG+8}:{vG+9}], v{vA3}, {S_WS}, s{sT0} offen offset:512 sc1")
    A("s_waitcnt vmcnt(0)")
    A(f"v_max3_u32 v{vT}, v{vG}, v{vG+1}, v{vG+2}")
    A(f"v_max3_u32 v{vT}, v{vT}, v{vG+3}, v{vG+4}")
    A(f"v_max3_u32 v{vT}, v{vT}, v{vG+5}, v{vG+6}")
    A(f"v_max3_u32 v{vT}, v{vT}, v{vG+7}, v{vG+8}")
    A(f"v_max_u32 v{vT}, v{vT}, v{vG+9}")
    A(f"v_cmp_eq_u32 vcc, -1, v{vT}")
    A(f"s_add_u32 s{sCNT}, s{sCNT}, 1")
    A("s_and_b64 exec, exec, vcc")
    A("s_cbranch_scc0 L_p1_done")
    A(f"s_cmp_ge_u32 s{sCNT}, {SPIN_LIMIT}")
    A("s_cbranch_scc1 L_p1_done")
    A("s_sleep 1")
    A("s_branch L_p1")
    LAB("L_p1_done")
    A("s_mov_b64 exec, -1")
    vm, vl = vG + 8, vG + 9
    A(f"v_mov_b32 v{vT}, v{vm}")
    red8("max", [vT])
    A(f"v_sub_f32 v{vm}, v{vm}, v{vT}")
    A(f"v_mul_f32 v{vm}, s{sLOG2E}, v{vm}")
    A(f"v_exp_f32 v{vm}, v{vm}")
    A(f"v_mul_f32 v{vl}, v{vl}, v{vm}")
    red8("add", [vl])
    A(f"v_rcp_f32 v{vT}, v{vl}")
    A(f"v_fma_f32 v{vT+1}, -v{vl}, v{vT}, 1.0")
    A(f"v_fma_f32 v{vT}, v{vT+1}, v{vT}, v{vT}")
    A(f"v_mul_f32 v{vm}, v{vm}, v{vT}")
    for k in range(8):
        A(f"v_mul_f32 v{vG+k}, v{vG+k}, v{vm}")
    red8("add", [vG + k for k in range(8)])
    for k in range(0, 8, 2):
        rnd2(vG + k, vG + k + 1, vT)
    A(f"s_lshl_b32 s{sT0}, s{sW}, 8")
    A(f"v_lshrrev_b32 v{vT+1}, 3, v{vLANE}")
    A(f"v_lshl_add_u32 v{vA3}, v{vT+1}, 4, s{sT0}")
    A(f"ds_write_b128 v{vA3}, v[{vG}:{vG+3}] offset:{L_OVEC}")
    A(f"ds_write_b128 v{vA3}, v[{vG+4}:{vG+7}] offset:{L_OVEC+128}")
    A("s_waitcnt lgkmcnt(0)")
    A("s_barrier")
    A(f"v_lshlrev_b32 v{vT}, 2, v{vA1}")
    A(f"ds_read_b32 v{vU}, v{vT} offset:{L_OVEC}")
    A(f"ds_read_b32 v{vU+1}, v{vT} offset:{L_OVEC+1024}")
    A("s_waitcnt lgkmcnt(0)")
    gemv16(vWO, vU, vU + 1, L_RED2)
    A("s_waitcnt lgkmcnt(0)")
    A("s_barrier")
    A(f"s_cmp_lg_u32 s{sW}, 0")
    A("s_cbranch_scc1 L_hop2")
    gemv16_final(L_RED2)
    for k in range(4):
        A(f"v_min_u32 v{vACC+k}, -2, v{vACC+k}")
    A("s_mov_b64 exec, 15")
    A(f"buffer_store_dwordx4 v[{vACC}:{vACC+3}], v{vOFFK}, {S_WS}, s{sSL2} offen sc1")
    A("s_mov_b64 exec, -1")
    LAB("L_hop2")
    A(f"v_and_b32 v{vT}, 7, v{vLANE}")
    A(f"v_lshlrev_b32 v{vA5}, 11, v{vT}")
    A(f"v_lshrrev_b32 v{vT+1}, 3, v{vLANE}")
    A(f"v_lshl_add_u32 v{vA5}, v{vT+1}, 4, v{vA5}")
    A(f"s_lshl_b32 s{sT3}, s{sW}, 8")
    A(f"s_add_u32 s{sT3}, s{sT3}, 0x{W_2:x}")
    A(f"s_mov_b32 s{sCNT}, 0")
    LAB("L_p2")
    A(f"buffer_load_dwordx4 v[{vG}:{vG+3}], v{vA5}, {S_WS}, s{sT3} offen sc1")
    A(f"buffer_load_dwordx4 v[{vG+4}:{vG+7}], v{vA5}, {S_WS}, s{sT3} offen offset:128 sc1")
    A("s_waitcnt vmcnt(0)")
    A(f"v_max3_u32 v{vT}, v{vG}, v{vG+1}, v{vG+2}")
    A(f"v_max3_u32 v{vT}, v{vT}, v{vG+3}, v{vG+4}")
    A(f"v_max3_u32 v{vT}, v{vT}, v{vG+5}, v{vG+6}")
    A(f"v_max_u32 v{vT}, v{vT}, v{vG+7}")
    A(f"v_cmp_eq_u32 vcc, -1, v{vT}")
    A(f"s_add_u32 s{sCNT}, s{sCNT}, 1")
    A("s_and_b64 exec, exec, vcc")
    A("s_cbranch_scc0 L_p2_done")
    A(f"s_cmp_ge_u32 s{sCNT}, {SPIN_LIMIT}")
    A("s_cbranch_scc1 L_p2_done")
    A("s_sleep 1")
    A("s_branch L_p2")
    LAB("L_p2_done")
    A("s_mov_b64 exec, -1")
    red8("add", [vG + k for k in range(8)])
    A(f"ds_write_b128 v{vA3}, v[{vG}:{vG+3}] offset:{L_AVEC}")
    A(f"ds_write_b128 v{vA3}, v[{vG+4}:{vG+7}] offset:{L_AVEC+128}")
    A("s_waitcnt lgkmcnt(0)")
    A("s_barrier")
    vAT = vP
    vX1 = vP + 8
    vHH = RA
    vH2 = RA + 8
    A(f"v_lshlrev_b32 v{vA3}, 5, v{vLANE}")
    A(f"ds_read_b128 v[{vAT}:{vAT+3}], v{vA3} offset:{L_AVEC}")
    A(f"ds_read_b128 v[{vAT+4}:{vAT+7}], v{vA3} offset:{L_AVEC+16}")
    unpack8(vGA, vT)
    unpack8(vX, vX1)
    A("s_waitcnt lgkmcnt(0)")
    for k in range(0, 8, 2):
        rnd2(vAT + k, vAT + k + 1, vT + 8)
    for k in range(8):
        A(f"v_mul_f32 v{vAT+k}, v{vAT+k}, v{vT+k}")
    for k in range(0, 8, 2):
        rnd2(vAT + k, vAT + k + 1, vT + 8)
    for k in range(8):
        A(f"v_add_f32 v{vX1+k}, v{vX1+k}, v{vAT+k}")
    for k in range(0, 8, 2):
        rnd2(vX1 + k, vX1 + k + 1, vT + 8)
    A(f"ds_write_b128 v{vA3}, v[{vX1}:{vX1+3}] offset:{L_X1}")
    A(f"ds_write_b128 v{vA3}, v[{vX1+4}:{vX1+7}] offset:{L_X1+16}")
    layernorm8(vX1, vHH, vT)
    modulate8(vHH, vCB, vSB, vT)
    layernorm8(vHH, vH2, vT)
    A(f"ds_write_b128 v{vA3}, v[{vH2}:{vH2+3}] offset:{L_H2}")
    A(f"ds_write_b128 v{vA3}, v[{vH2+4}:{vH2+7}] offset:{L_H2+16}")
    A(f"s_lshl_b32 s{sT0}, s2, 3")
    A(f"v_mov_b32 v{vA3}, s{sT0}")
    A(f"ds_read_b64 v[{vU}:{vU+1}], v{vA3} offset:{L_H2}")
    A(f"ds_read_b64 v[{vU+2}:{vU+3}], v{vA3} offset:{L_X1}")
    w1, b1, w2 = RB, RB + 4, RB + 8
    for src, dst in ((vW1, w1), (vB1, b1), (vW2, w2)):
        for k in range(2):
            A(f"v_lshlrev_b32 v{dst+2*k}, 16, v{src+k}")
            A(f"v_and_b32 v{dst+2*k+1}, s{sHI}, v{src+k}")
    import math
    k0 = -2.0 * math.log2(math.e) * math.sqrt(2.0 / math.pi)
    k1 = k0 * 0.044715
    A(f"s_mov_b32 s{sC1}, 0x{f32bits(k0):08x}")
    A(f"s_mov_b32 s{sC2}, 0x{f32bits(k1):08x}")
    A(f"v_mov_b32 v{vU+4}, s{sC1}")
    A("s_waitcnt lgkmcnt(0)")
    u = RB + 16
    e = RB + 24
    for d in range(2):
        for f in range(4):
            A(f"v_mul_f32 v{u+4*d+f}, v{vU+d}, v{w1+f}")
    for k in range(0, 8, 2):
        rnd2(u + k, u + k + 1, vT)
    for d in range(2):
        for f in range(4):
            A(f"v_add_f32 v{u+4*d+f}, v{u+4*d+f}, v{b1+f}")
    for k in range(0, 8, 2):
        rnd2(u + k, u + k + 1, vT)
    for k in range(8):
        A(f"v_mul_f32 v{e+k}, v{u+k}, v{u+k}")
    for k in range(8):
        A(f"v_fma_f32 v{e+k}, v{e+k}, s{sC2}, v{vU+4}")
    for k in range(8):
        A(f"v_mul_f32 v{e+k}, v{e+k}, v{u+k}")
    for k in range(8):
        A(f"v_exp_f32 v{e+k}, v{e+k}")
    for k in range(8):
        A(f"v_add_f32 v{e+k}, 1.0, v{e+k}")
    for k in range(8):
        A(f"v_rcp_f32 v{e+k}, v{e+k}")
    for k in range(8):
        A(f"v_mul_f32 v{u+k}, v{u+k}, v{e+k}")
    for k in range(0, 8, 2):
        rnd2(u + k, u + k + 1, vT)
    for d in range(2):
        A(f"v_mul_f32 v{vACC+d}, v{u+4*d}, v{w2}")
        for f in range(1, 4):
            A(f"v_fmac_f32 v{vACC+d}, v{u+4*d+f}, v{w2+f}")
    wave_red("add", vACC, vT)
    wave_red("add", vACC + 1, vT + 1)
    A(f"s_lshl_b32 s{sT0}, s{sW}, 3")
    A(f"v_mov_b32 v{vA3}, s{sT0}")
    A(f"ds_write_b64 v{vA3}, v[{vACC}:{vACC+1}] offset:{L_FIN}")
    A("s_waitcnt lgkmcnt(0)")
    A("s_barrier")
    A(f"s_cmp_lg_u32 s{sW}, 0")
    A("s_cbranch_scc1 L_end")
    A(f"v_mov_b32 v{vA3}, 0")
    for k in range(4):
        A(f"ds_read_b128 v[{vP+4*k}:{vP+4*k+3}], v{vA3} offset:{L_FIN+16*k}")
    A("s_waitcnt lgkmcnt(0)")
    for x in (2, 4, 6, 8, 10, 12, 14):
        A(f"v_add_f32 v{vP}, v{vP}, v{vP+x}")
        A(f"v_add_f32 v{vP+1}, v{vP+1}, v{vP+x+1}")
    rnd2(vP, vP + 1, vT)
    A(f"v_lshlrev_b32 v{vB2}, 16, v{vB2}")
    A(f"v_add_f32 v{vP}, v{vP}, v{vB2}")
    A(f"v_add_f32 v{vP+1}, v{vP+1}, v{vB2}")
    rnd2(vP, vP + 1, vT)
    A(f"v_lshlrev_b32 v{vT}, 16, v{vGB}")
    A(f"v_and_b32 v{vT+1}, s{sHI}, v{vGB}")
    A(f"v_mul_f32 v{vP}, v{vP}, v{vT}")
    A(f"v_mul_f32 v{vP+1}, v{vP+1}, v{vT+1}")
    rnd2(vP, vP + 1, vT)
    A(f"v_add_f32 v{vP}, v{vP}, v{vU+2}")
    A(f"v_add_f32 v{vP+1}, v{vP+1}, v{vU+3}")
    A(f"v_cvt_pk_bf16_f32 v{vP}, v{vP}, v{vP+1}")
    A(f"s_lshl_b32 s{sT0}, s2, 2")
    A("s_mov_b64 exec, 1")
    A(f"buffer_store_dword v{vP}, v{vA3}, {S_OUT}, s{sT0} offen")
    if STAMP:
        A("s_memrealtime s[24:25]")
        A("s_waitcnt lgkmcnt(0)")
        for k, s in enumerate((sSTAMP, sSTAMP + 2, sSTAMP + 4, sSTAMP + 6, 24)):
            A(f"v_mov_b32 v{vT}, s{s}")
            A(f"s_lshl_b32 s{sT0}, s2, 5")
            A(f"s_add_u32 s{sT0}, s{sT0}, {0x80000 + 4*k}")
            A(f"buffer_store_dword v{vT}, v{vA3}, {S_WS}, s{sT0} offen")
    LAB("L_end")
    A("s_endpgm")
    body = fix_hazards(L)
    tail = [
        '.section .rodata,"a"', ".p2align 6", f".amdhsa_kernel {KN}",
        "  .amdhsa_next_free_vgpr 256", "  .amdhsa_next_free_sgpr 102", "  .amdhsa_accum_offset 256",
        "  .amdhsa_group_segment_fixed_size 0", "  .amdhsa_kernarg_size 120", "  .amdhsa_user_sgpr_count 2",
        "  .amdhsa_user_sgpr_kernarg_segment_ptr 1", "  .amdhsa_system_sgpr_workgroup_id_x 1",
        "  .amdhsa_float_denorm_mode_32 3",
        ".end_amdhsa_kernel"]
    return "\n".join(body + tail) + "\n"


if __name__ == "__main__":
    out = sys.argv[1] if len(sys.argv) > 1 else "k1.s"
    opt = eval(sys.argv[2]) if len(sys.argv) > 2 else {}
    open(out, "w").write(gen(opt))
```
